```python
import torch

def _softmax(x, axis=-1):
    return torch.softmax(x, dim=axis)

def _gelu(x):
    return torch.nn.functional.gelu(x, approximate='tanh')

def _silu(x):
    return torch.nn.functional.silu(x)

def _sigmoid(x):
    return torch.sigmoid(x)

def _layernorm(x, axis=-1, eps=1e-05):
    m = x.mean(dim=axis, keepdim=True)
    v = x.var(dim=axis, keepdim=True, unbiased=False)
    return (x - m) / torch.sqrt(v + eps)

def _scatter_add(tgt, idx, src, axis=0):
    return tgt.clone().index_add_(axis, idx, src)

def _segment_sum(src, seg, n):
    out = torch.zeros((n,) + src.shape[1:], dtype=src.dtype)
    return out.index_add_(0, seg, src)

def _pad(x, pw):
    flat = tuple((v for pair in reversed(pw) for v in pair))
    return torch.nn.functional.pad(x, flat)
kernel_name = 'parallel_sum__memory_aug_recurrent_mem_tr__dense_activation_relu__prompt'

def setup_inputs():

    _w = lambda a: (lambda t: t.to(torch.bfloat16) if t.is_floating_point() else t)(torch.as_tensor(a))

    def _A_setup():
        B, S, Dm = (1, 2048, 512)
        H, Dh = (32, 128)
        M, seg = (8, 32)
        seg = min(seg, S)
        S = S // seg * seg
        return {'x': _w((lambda *s: torch.randn(*s, dtype=torch.bfloat16) * 0.05)(B, S, Dm)), 'mem0': _w((lambda *s: torch.randn(*s, dtype=torch.bfloat16) * 1.6)(B, M, Dm)), 'Wq': _w((lambda *s: torch.randn(*s, dtype=torch.bfloat16) * 0.8)(Dm, H, Dh) * Dm ** (-0.5)), 'Wk': _w((lambda *s: torch.randn(*s, dtype=torch.bfloat16) * 0.8)(Dm, H, Dh) * Dm ** (-0.5)), 'Wv': _w((lambda *s: torch.randn(*s, dtype=torch.bfloat16) * 1.6)(Dm, H, Dh) * Dm ** (-0.5)), 'Wo': _w((lambda *s: torch.randn(*s, dtype=torch.bfloat16) * 1.6)(H, Dh, Dm) * (H * Dh) ** (-0.5)), 'seg_len': seg}
    _A_in = _A_setup()

    def _B_setup():
        B, S, D, Dff = (1, 2048, 512, 1792)
        return {'x': _w((lambda *s: torch.randn(*s, dtype=torch.bfloat16) * 0.05)(B, S, D)), 'w1': _w((lambda *s: torch.randn(*s, dtype=torch.bfloat16) * 0.05)(D, Dff)), 'w2': _w((lambda *s: torch.randn(*s, dtype=torch.bfloat16) * 0.05)(Dff, D))}
    _B_in = _B_setup()
    return {'A_x': _A_in['x'], 'A_mem0': _A_in['mem0'], 'A_Wq': _A_in['Wq'], 'A_Wk': _A_in['Wk'], 'A_Wv': _A_in['Wv'], 'A_Wo': _A_in['Wo'], 'A_seg_len': _A_in['seg_len'], 'B_x': _B_in['x'], 'B_w1': _B_in['w1'], 'B_w2': _B_in['w2']}

def reference(A_x, A_mem0, A_Wq, A_Wk, A_Wv, A_Wo, A_seg_len, B_x, B_w1, B_w2):

    def _A_ref(x, mem0, Wq, Wk, Wv, Wo, seg_len):
        B, S, Dm = x.shape
        H, Dh = (Wq.shape[1], Wq.shape[2])
        M = mem0.shape[1]
        scale = Dh ** (-0.5)
        n_seg = S // seg_len
        L = M + seg_len
        idx = torch.arange(L)
        mask = (idx[:, None] < M) | (idx[:, None] >= idx[None, :])
        mem = mem0
        outs = []
        for s in range(n_seg):
            xs = x[:, s * seg_len:(s + 1) * seg_len, :].clone()
            h = torch.concatenate([mem, xs], axis=1)
            q = torch.einsum('btd,dhe->bhte', h, Wq)
            k = torch.einsum('btd,dhe->bhte', h, Wk)
            v = torch.einsum('btd,dhe->bhte', h, Wv)
            scores = torch.einsum('bhqe,bhke->bhqk', q, k) * scale
            scores = torch.where(mask[None, None], scores, -1000000000.0)
            p = _softmax(scores, axis=-1)
            o = torch.einsum('bhqk,bhke->bhqe', p, v)
            o = torch.einsum('bhte,hed->btd', o, Wo)
            mem = o[:, :M, :].clone()
            outs.append(o[:, M:, :])
        return torch.concatenate(outs, axis=1)

    def _B_ref(x, w1, w2):
        h = torch.einsum('bsd,df->bsf', x, w1)
        zero = torch.zeros_like(h)
        h = torch.maximum(h, zero)
        return torch.einsum('bsf,fd->bsd', h, w2)
    x = A_x
    xn = _layernorm(x, axis=-1)
    return x + _A_ref(xn, A_mem0, A_Wq, A_Wk, A_Wv, A_Wo, A_seg_len) + _B_ref(xn, B_w1, B_w2)
```

```python
import re

REG_RE = re.compile(r'^(-?)(?:abs\()?([vas])(?:(\d+)|\[(\d+):(\d+)\])\)?$')

def parse_reg(tok):
    tok = tok.strip().replace('|', '')
    if tok in ('vcc',): return {('s', 'vcc')}
    if tok in ('vcc_lo', 'vcc_hi'): return {('s', 'vcc')}
    if tok in ('exec', 'exec_lo', 'exec_hi'): return {('s', 'exec')}
    if tok == 'm0': return {('s', 'm0')}
    m = REG_RE.match(tok)
    if not m: return set()
    k = m.group(2)
    if m.group(3) is not None:
        return {(k, int(m.group(3)))}
    return {(k, i) for i in range(int(m.group(4)), int(m.group(5)) + 1)}

TRANS = ('v_exp_f32', 'v_log_f32', 'v_rcp_f32', 'v_rsq_f32', 'v_sqrt_f32', 'v_rcp_iflag_f32')

class Ins:
    __slots__ = ('text', 'op', 'ops', 'kind', 'r', 'w', 'mods', 'label', 'target', 'A', 'B', 'C', 'D',
                 'passes', 'dpp', 'sdata', 'states', 'cmt')
    def __init__(self, text):
        self.text = text
        self.label = None; self.target = None
        self.r = set(); self.w = set(); self.A = set(); self.B = set(); self.C = set(); self.D = set()
        self.passes = 0; self.dpp = False; self.sdata = set(); self.states = 1
        t = text.split(';')[0].strip()
        if t.endswith(':'):
            self.kind = 'label'; self.label = t[:-1]; self.op = ''; self.states = 0; return
        if not t or t.startswith('.'):
            self.kind = 'dir'; self.op = ''; self.states = 0; return
        t = re.sub(r'\s+(op_sel|op_sel_hi|neg_lo|neg_hi):\[[^\]]*\]', '', t)
        parts = t.split(None, 1)
        op = parts[0]; self.op = op
        rest = parts[1] if len(parts) > 1 else ''
        toks = [x.strip() for x in rest.split(',')] if rest else []
        mods = ''
        if toks:
            last = toks[-1].split()
            if last:
                toks[-1] = last[0]; mods = ' '.join(last[1:])
        self.ops = toks; self.mods = mods
        R = [parse_reg(x) for x in toks]
        if op == 's_nop':
            self.kind = 'nop'; self.states = int(toks[0], 0) + 1; return
        if op.startswith('s_cbranch') or op == 's_branch':
            self.kind = 'branch'; self.target = toks[0]; return
        if op == 's_endpgm':
            self.kind = 'end'; return
        if op.startswith('s_'):
            self.kind = 'salu'
            if op.startswith('s_cmp') or op in ('s_waitcnt', 's_barrier', 's_setprio', 's_sleep', 's_bitcmp1_b32', 's_bitcmp0_b32'):
                for x in R: self.r |= x
            else:
                if R: self.w |= R[0]
                for x in R[1:]: self.r |= x
                if 'saveexec' in op: self.w |= {('s', 'exec')}
            return
        if op.startswith('v_mfma') or op.startswith('v_smfmac'):
            self.kind = 'mfma'
            self.D = R[0]; self.A = R[1]; self.B = R[2]
            if op.startswith('v_smfmac'):
                self.C = R[0]; self.A = self.A | R[3]
            else:
                self.C = R[3]
            self.passes = 8 if '32x32' in op else 4
            self.r = self.A | self.B | self.C; self.w = self.D
            return
        if op.startswith('v_'):
            self.kind = 'valu'
            self.dpp = ('_dpp' in op) or ('row_' in mods) or ('quad_perm' in mods)
            if op.startswith('v_cmpx'):
                self.w |= R[0] | {('s', 'exec')}
                for x in R[1:]: self.r |= x
            elif op.startswith('v_permlane'):
                self.w |= R[0] | R[1]; self.r |= R[0] | R[1]
            elif op in ('v_add_co_u32', 'v_sub_co_u32', 'v_addc_co_u32'):
                self.w |= R[0] | R[1]
                for x in R[2:]: self.r |= x
            else:
                self.w |= R[0]
                for x in R[1:]: self.r |= x
                if op.startswith('v_fmac') or op.startswith('v_smfmac') or op.startswith('v_writelane') or (self.dpp and ('bank_mask:0xf' not in mods or 'row_mask:0xf' not in mods)):
                    self.r |= R[0]
            return
        if op == 'buffer_wbl2':
            self.kind = 'vmem'; return
        if op.startswith('buffer_') or op.startswith('global_') or op.startswith('ds_'):
            self.kind = 'ds' if op.startswith('ds_') else 'vmem'
            isbuf = op.startswith('buffer_')
            if '_load' in op or op.startswith('ds_read'):
                if 'd16' in op: self.r |= R[0]
                if 'lds' in mods.split():
                    for x in R: self.r |= x
                    self.r |= {('s', 'm0')}
                else:
                    self.w |= R[0]
                    for x in R[1:]: self.r |= x
            elif 'atomic' in op:
                ret = 'sc0' in mods.split()
                if isbuf:
                    for x in R: self.r |= x
                    if ret: self.w |= R[0]
                else:
                    if ret:
                        self.w |= R[0]
                        for x in R[1:]: self.r |= x
                    else:
                        for x in R: self.r |= x
            else:
                for x in R: self.r |= x
                if 'x4' in op or 'x3' in op:
                    self.sdata = R[0] if isbuf else R[1]
            return
        raise ValueError('unknown instruction: ' + text)

def vec(s): return {x for x in s if x[0] in 'va'}
def sca(s): return {x for x in s if x[0] == 's'}

def need(p, c):
    n = 0
    if p.kind == 'valu':
        wv = vec(p.w); ws = sca(p.w)
        if c.kind == 'valu':
            if wv & c.r:
                if c.op.startswith('v_readlane') or c.op.startswith('v_readfirstlane'): n = max(n, 1)
                if c.dpp: n = max(n, 2)
                if c.op.startswith('v_permlane'): n = max(n, 2)
                if p.op in TRANS: n = max(n, 1)
            if ('s', 'exec') in ws:
                if c.dpp: n = max(n, 5)
                if c.op.startswith('v_readlane') or c.op.startswith('v_readfirstlane') or c.op.startswith('v_writelane') or c.op.startswith('v_permlane'): n = max(n, 4)
                if ('s', 'exec') in c.r: n = max(n, 2)
            if (ws - {('s', 'exec')}) & c.r:
                n = max(n, 4 if (c.op.startswith('v_readlane') or c.op.startswith('v_writelane')) else 2)
        elif c.kind == 'mfma':
            if wv & c.r: n = max(n, 2)
            if ('s', 'exec') in ws: n = max(n, 4)
        elif c.kind in ('vmem',):
            if ws & c.r: n = max(n, 5)
            if ('s', 'exec') in ws: n = max(n, 0)
    elif p.kind == 'mfma':
        big = 8 if p.passes == 4 else 12
        if c.kind == 'mfma':
            if p.D & (c.A | c.B): n = max(n, big)
            if p.D & c.C:
                if not (p.D == c.C and p.passes == c.passes): n = max(n, 6 if p.passes == 4 else 10)
            elif p.D & c.D:
                n = max(n, big)
        elif c.kind in ('valu', 'vmem', 'ds'):
            if p.D & (c.r | c.w): n = max(n, big)
            if c.kind == 'valu' and (p.C & c.w): n = max(n, 3 if p.passes == 4 else 7)
    elif p.kind == 'vmem':
        if p.sdata & c.w:
            n = max(n, 2 if c.kind in ('valu', 'mfma') else 1)
    elif p.kind == 'salu':
        if ('s', 'm0') in p.w and c.kind == 'vmem' and ('s', 'm0') in c.r: n = max(n, 1)
    return n

MAXD = 13
def mslots(q):
    return 2 if '16x16x16' in q.op else q.passes

class Asm:
    def __init__(self):
        self.lines = []
    def __call__(self, text):
        for ln in text.split('\n'):
            ln = ln.strip()
            if ln: self.lines.append(ln)
    def finalize(self, verbose=False, pipe=True):
        ins = [Ins(l) for l in self.lines if not l.startswith(';')]
        pad = [0] * len(ins)
        labels = {x.label: i for i, x in enumerate(ins) if x.kind == 'label'}
        preds = {}
        for i, x in enumerate(ins):
            if x.kind == 'branch':
                preds.setdefault(labels[x.target], []).append(i)
        changed = True
        while changed:
            changed = False
            for i, c in enumerate(ins):
                if c.kind not in ('valu', 'mfma', 'vmem', 'ds', 'salu'): continue
                req = 0
                stack = [(i - 1, pad[i])]; seen = {}
                while stack:
                    j, d = stack.pop()
                    if j < 0 or d >= MAXD: continue
                    if seen.get(j, 99) <= d: continue
                    seen[j] = d
                    p = ins[j]
                    if p.kind == 'label':
                        for b in preds.get(j, []): stack.append((b, d))
                        k = j - 1
                        while k >= 0 and ins[k].kind == 'dir': k -= 1
                        if k >= 0 and ins[k].op not in ('s_branch', 's_endpgm'): stack.append((j - 1, d))
                        continue
                    if p.kind == 'end': continue
                    nn = need(p, c)
                    if nn > d and pipe and p.kind == 'mfma':
                        if j < i and all(ins[k].kind not in ('label', 'branch') for k in range(j + 1, i)):
                            t = 0; last = 0; lastp = mslots(p)
                            for k in range(j + 1, i + 1):
                                q = ins[k]
                                if q.kind == 'dir': continue
                                t += pad[k]
                                tq = t + 1
                                if q.kind == 'mfma':
                                    tq = max(tq, last + lastp); last = tq; lastp = mslots(q)
                                if k == i: dd = tq - 1
                                t = tq + q.states - 1
                            if nn > dd: req = max(req, nn - dd)
                        else: req = max(req, nn - d)
                    elif nn > d: req = max(req, nn - d)
                    stack.append((j - 1, d + p.states + pad[j]))
                if req > 0:
                    pad[i] += req; changed = True
                    if verbose: print('nop', req, 'before', c.text)
        out = []
        for i, x in enumerate(ins):
            n = pad[i]
            while n > 0:
                k = min(n, 16); out.append('s_nop %d' % (k - 1)); n -= k
            out.append(x.text)
        res = []; i = 0
        while i < len(out):
            if out[i].startswith('.;ab'):
                j = out.index('.;ae', i)
                res += place(out[i + 1:j], int(out[i].split()[1]), verbose); i = j + 1
            else: res.append(out[i]); i += 1
        return '\n'.join(l.replace(' ;L', '') for l in res if l != '.;nc')

SOPP = ('s_nop', 's_waitcnt', 's_barrier', 's_branch', 's_sleep', 's_endpgm', 's_setprio')
V3 = ('v_cvt_pk', 'v_max3', 'v_or3', 'v_bitop3', 'v_bfi', 'v_perm', 'v_add3', 'v_lshl_add', 'v_lshl_or', 'v_and_or', 'v_pk_', 'v_mfma', 'v_smfmac',
      'v_accvgpr', 'v_writelane', 'v_readlane', 'v_bfe')
FLEX = ('v_exp_f32', 'v_rcp_f32', 'v_mov_b64', 'v_mov_b32', 'v_cmp_', 'v_max_u32', 'v_lshlrev_b32', 'v_and_b32')
def literal(t):
    try: v = int(t, 0)
    except ValueError: return False
    return not -16 <= v <= 64
def isize(x):
    op = x.op
    if x.kind in ('label', 'dir'): return 0, False
    if op in SOPP or op.startswith('s_cbranch'): return 4, op == 's_nop' and x.states > 1
    if op.startswith('s_mem') or op.startswith('s_load'): return 8, False
    if op.startswith('s_'): return (8 if any(literal(t) for t in x.ops) else 4), False
    if x.kind in ('ds', 'vmem', 'mfma') or x.dpp or op.startswith(V3) or '|' in x.text or op.endswith('_e64'): return 8, False
    if any(literal(t) for t in x.ops): return 8, False
    assert op.startswith(FLEX) or op.startswith('v_permlane'), x.text
    assert len(x.ops) < 3 or x.ops[2].startswith('v'), x.text
    return 4, op.startswith(FLEX)
def wide(x):
    if x.op == 's_nop':
        h = x.states // 2
        return ['s_nop %d' % (h - 1), 's_nop %d' % (x.states - h - 1)]
    return [x.text.replace(x.op, x.op + '_e64', 1)]
def place(lines, ph0, verbose=False, beam=400):
    ins = [Ins(l) for l in lines]
    NEG = -99
    def step(st, x, size, free=False):
        pos, t, tv, pp, a1, a2, vc = st
        w0 = pos // 32; w1 = (pos + size - 1) // 32; cur = (pos - 1) // 32 if pos else -1
        ti = t
        if x is not None:
            if x.kind in ('valu', 'mfma'): ti = max(ti, tv)
            if x.kind == 'mfma': ti = max(ti, pp)
            if x.op.startswith('s_cbranch_vcc'): ti = max(ti, vc)
        if w1 > cur: ti = max(ti, a1)
        n = 1
        if x is not None:
            if x.kind == 'nop': n = x.states if size == 4 else x.states
            elif x.op.startswith(TRANS): n = 2
            elif x.kind == 'mfma':
                n = 2; pp = ti + mslots(x); tv = ti + (3 if x.op.startswith('v_smfmac') else 2)
            elif x.op == 'ds_write_b128': n = 6
            elif x.op == 'ds_write_b64': n = 3
            elif x.op == 's_barrier': n = 3
            if x.op.startswith('v_cmp'): vc = ti + 6
        te = ti + n
        if w1 > cur:
            a1 = (te + 4) if w0 == cur else a2
            a2 = NEG
        if (pos + size) % 32 == 0: a2 = te + 4
        if x is not None and x.kind == 'branch': a1 = max(a1, te + 4) if (pos + size) % 32 else max(a1, te + 4)
        if x is not None and ';L' in x.text: a1 = NEG; a2 = NEG if a2 != NEG else a2; tv = pp = vc = NEG
        if free: te = t if max(a1, a2) <= t else te
        return (pos + size, te, tv, pp, a1, a2, vc)
    def key(st):
        pos, t, tv, pp, a1, a2, vc = st
        return (pos % 32,) + tuple(max(v - t, 0) for v in (tv, pp, a1, a2, vc))
    phases = range(8) if ph0 < 0 else [ph0 % 8]
    cand = [((64 + 4 * p, 0, NEG, NEG, NEG, NEG, NEG), 0, (p,)) for p in phases]
    cand = [((s[0], 0, NEG, NEG, NEG, 4 if s[0] % 32 == 0 else NEG, NEG) if s[0] % 32 == 0 else (s[0], 0, NEG, NEG, 4, NEG, NEG), e, c) for s, e, c in cand]
    base = None
    nc = False
    step0 = step
    def slack(st, x, size, free=False): return (st[0] + size, st[1], NEG, NEG, NEG, NEG, NEG)
    for x in ins:
        sz, fl = isize(x)
        if x.text == '.;nc': nc = True
        if ';L' in x.text: nc = False
        step = slack if nc else step0
        if sz == 0: continue
        nxt = {}
        def push(st, e, c):
            k = key(st)
            if k not in nxt or (st[1], e) < (nxt[k][0][1], nxt[k][1]): nxt[k] = (st, e, c)
        for st, e, c in cand:
            push(step(st, x, sz), e, c + (0,))
            if fl:
                if x.op == 's_nop':
                    a_, b_ = [Ins(t) for t in wide(x)]
                    push(step(step(st, a_, 4), b_, 4), e + 1, c + (1,))
                else: push(step(st, x, 8), e + 1, c + (1,))
            push(step(step(st, None, 4, free=';L' in x.text), x, sz), e + 2, c + (2,))
        cand = sorted(nxt.values(), key=lambda z: (z[0][1], z[1]))[:beam]
    st, e, c = cand[0]
    if verbose or True:
        ref = []
        for p in range(8):
            s_ = (64 + 4 * p, 0, NEG, NEG, NEG if p == 0 else 4, 4 if p == 0 else NEG, NEG)
            nc = False
            for x in ins:
                sz, fl = isize(x)
                if x.text == '.;nc': nc = True
                if ';L' in x.text: nc = False
                if sz: s_ = (slack if nc else step0)(s_, x, sz)
            ref.append(s_[1])
        print('place', lines[0], 'slots', st[1], 'edits', e, 'phase', c[0], 'unedited', ref)
    out = ['.p2align 6'] + (['.fill %d, 4, 0xbf800000' % c[0]] if c[0] else [])
    k = 1
    for x in ins:
        sz, fl = isize(x)
        if sz == 0:
            if x.text != '.;nc': out.append(x.text)
            continue
        if c[k] == 1: out += wide(x)
        elif c[k] == 2: out += ['s_nop 0', x.text]
        else: out.append(x.text)
        k += 1
    return out
```

```python
import sys, math, struct
from asmlib import Asm

NAME = "parallel_sum__memory_aug_recurrent_mem_tr__dense_activation_relu__prompt"
OPT = dict(stamps=False, nsteps=63)
for a_ in sys.argv[2:]:
    k_, v_ = a_.split('='); OPT[k_] = int(v_)

F_XN, F_S1, F_KC, F_KL, F_PG, F_O = 0x0, 0x400, 0x800, 0x1000, 0x1800, (0x1c00 if OPT.get('sp') else 0x2000)
FLAG_BYTES = 0x6000
NCLR = FLAG_BYTES // 4096 * (2 if OPT.get('tg', 0) == 3 else 1)
PART, XN, MEM = 0x100000, 0x200000, 0x400000
PXB, RB = 0x480000, 0x580000
QB, KB, VB, OB, HB, KVM = 0x1000000, 0x2000000, 0x3000000, 0x4000000, 0x5000000, 0x6040000
STAMP = 0x8000000
D_SURP, D_CLR, D_TICK0, D_RV, D_MIX = 40, 64, 128, 132, 136
SPIN = 1 << 19
C1 = struct.unpack('<I', struct.pack('<f', 128 ** -0.5 * math.log2(math.e)))[0]
PLO, PHI = 0x05040100, 0x07060302

a = Asm()
uid = [0]
def L(p):
    uid[0] += 1
    return "L_%s_%d" % (p, uid[0])

class Q:
    def __init__(self, name, cap): self.n = name; self.q = []; self.cap = cap
    def issue(self, tag=None): self.q.append(tag)
    def wait(self, tag, long=False):
        idx = max(i for i, t in enumerate(self.q) if t == tag)
        n = len(self.q) - 1 - idx
        assert n <= self.cap, (self.n, n)
        a("s_waitcnt %s(%d)" % (self.n, n) + (" ;L" if long else "")); self.q = self.q[idx + 1:]
    def has(self, tag): return tag in self.q
    def drain(self, long=False):
        a("s_waitcnt %s(0)" % self.n + (" ;L" if long else "")); self.q = []

def vr(b, n=1, k='v'): return "%s%d" % (k, b) if n == 1 else "%s[%d:%d]" % (k, b, b + n - 1)

WS, SX_, SO, SW0, SW1, SW2, SW3, SM0 = "s[4:7]", "s[8:11]", "s[12:15]", "s[16:19]", "s[20:23]", "s[24:27]", "s[28:31]", "s[32:35]"
DBG = "s[36:37]"

def srd(dst, lo, hi, size):
    a("s_mov_b32 s%d, s%d\ns_mov_b32 s%d, s%d\ns_mov_b32 s%d, 0x%x\ns_mov_b32 s%d, 0x20000" % (dst, lo, dst + 1, hi, dst + 2, size, dst + 3))

def wait_flags(vaddr, vdst, soff, cnt="s57", const=0, thr="0", nap=0):
    l = L("wf")
    a(f"s_mov_b32 {cnt}, 0")
    a(f"{l}:")
    a(f"buffer_load_dword {vdst}, {vaddr}, {WS}, {soff} offen offset:{const} sc1")
    a(f"s_add_u32 {cnt}, {cnt}, 1\ns_cmp_ge_u32 {cnt}, {SPIN}\ns_cbranch_scc1 L_end")
    a(f"s_waitcnt vmcnt(0)\nv_cmp_ge_u32 vcc, {thr}, {vdst}")
    if nap:
        l2 = L("wfx")
        a(f"s_cbranch_vccz {l2}\ns_sleep {nap}\ns_branch {l}\n{l2}:")
    else:
        a(f"s_cbranch_vccnz {l}")

def wait_dbg(off, target, vt0, vt1, cnt="s57"):
    l = L("wd")
    a(f"s_mov_b32 {cnt}, 0\nv_mov_b32 {vt0}, {off}")
    a(f"{l}:")
    a(f"global_load_dword {vt1}, {vt0}, {DBG} sc1")
    a(f"s_add_u32 {cnt}, {cnt}, 1\ns_cmp_ge_u32 {cnt}, {SPIN}\ns_cbranch_scc1 L_end")
    a(f"s_waitcnt vmcnt(0)\nv_cmp_gt_u32 vcc, {target}, {vt1}\ns_cbranch_vccnz {l}")

def store_flag(vdata, soff, const=0):
    a(f"s_mov_b64 exec, 1\nbuffer_store_dword {vdata}, off, {WS}, {soff} offset:{const} sc1\ns_mov_b64 exec, -1")

def prologue():
    EP = OPT.get('ep', 0)
    def early():
        t = ""
        for j in range(EP):
            g = j // 4
            t += f"s_mov_b32 s56, 0x{(64*(j%4) + 256*(g%2) + 32*((g//2)%2) + 4*(g//4))*8192:x}\nbuffer_load_dwordx4 v[72:75], v6, s[16:19], s56 offen\n"
        return t
    EARLY1, EARLY0 = "", "s_waitcnt vmcnt(0)"
    if EP:
        EARLY1 = f"""s_mov_b32 s16, s44
s_mov_b32 s17, s45
s_mov_b32 s18, 0x400000
s_mov_b32 s19, 0x20000
s_bfe_u32 s56, s2, 0x50003
s_lshl_b32 s56, s56, 2
s_add_u32 s56, s56, s38
s_and_b32 s58, s56, 7
s_lshl_b32 s58, s58, 10
s_bfe_u32 s59, s56, 0x20003
s_lshl_b32 s59, s59, 13
s_add_u32 s58, s58, s59
s_bfe_u32 s59, s56, 0x20005
s_lshl_b32 s59, s59, 16
s_add_u32 s58, s58, s59
v_lshlrev_b32 v6, 4, v0
v_add_u32 v6, s58, v6
s_cmp_eq_u32 s38, 0
s_cbranch_scc1 L_early1
s_cmp_lg_u32 s40, 0
s_cbranch_scc1 L_early1
{early()}
L_early1:"""
        EARLY0 = f"""s_cmp_lg_u32 s40, 0
s_cbranch_scc1 L_early0
s_mov_b64 exec, -1
{early()}
s_mov_b64 exec, 1
s_waitcnt vmcnt({EP})
s_branch L_early2
L_early0:
s_waitcnt vmcnt(0)
L_early2:"""
    EQ = OPT.get('eq', 0)
    if EQ:
        t = ""
        for j in range(3 * EQ):
            t += f"""v_add_u32 v7, 0x{(j%3)*768*1024:x}, v6
v_and_b32 v8, 0x7fff, v7
v_lshrrev_b32 v7, 15, v7
v_lshl_add_u32 v7, v7, 16, v8
buffer_load_dwordx4 v[72:75], v7, s[16:19], {"s56" if j >= 3 else "0"} offen
"""
        EARLY1 = f"""s_cmp_eq_u32 s38, 0
s_cbranch_scc1 L_early1
s_mov_b32 s16, s44
s_mov_b32 s17, s45
s_mov_b32 s18, 0x400000
s_mov_b32 s19, 0x20000
s_mul_i32 s56, s2, 3
s_add_u32 s56, s56, s38
s_sub_u32 s56, s56, 1
s_lshl_b32 s56, s56, 10
v_lshlrev_b32 v6, 4, v0
v_add_u32 v6, s56, v6
s_mov_b32 s56, 0x8000
{t}
L_early1:"""
    a(f"""
s_cmp_ge_u32 s2, 256
s_cbranch_scc1 L_end
{"s_memrealtime s[100:101]" if OPT['stamps'] == 2 else ""}
s_load_dwordx2 s[8:9], s[0:1], 0
s_load_dwordx2 s[32:33], s[0:1], 8
s_load_dwordx8 s[44:51], s[0:1], 16
s_load_dwordx4 s[52:55], s[0:1], 64
s_load_dwordx2 s[12:13], s[0:1], 80
s_load_dwordx2 s[36:37], s[0:1], 88
s_load_dwordx2 s[4:5], s[0:1], 96
s_getreg_b32 s40, hwreg(HW_REG_XCC_ID, 0, 4)
v_lshrrev_b32 v1, 6, v0
v_and_b32 v0, 63, v0
{"s_xor_b32 s40, s40, %d" % OPT['rx'] if OPT.get('rx') else ""}
v_readfirstlane_b32 s38, v1
s_mov_b32 s6, 0x10000000
s_mov_b32 s7, 0x20000
s_mov_b32 s10, 0x200000
s_mov_b32 s11, 0x20000
s_mov_b32 s14, 0x200000
s_mov_b32 s15, 0x20000
s_mov_b32 s34, 0x2000
s_mov_b32 s35, 0x20000
s_waitcnt lgkmcnt(0)
{EARLY1}
s_cmp_lg_u32 s38, 0
s_cbranch_scc1 L_elected
s_min_u32 s41, s40, 8
s_lshl_b32 s42, s41, 2
s_cmp_eq_u32 s41, 0
s_cselect_b32 s42, {D_TICK0}, s42
v_mov_b32 v2, s42
v_mov_b32 v3, 1
s_mov_b64 exec, 1
global_atomic_add v4, v2, v3, {DBG} sc0 sc1
{EARLY0}
v_readfirstlane_b32 s43, v4
s_lshl_b32 s39, s41, 5
s_add_u32 s39, s39, s43
s_cmp_lt_u32 s43, 32
s_cselect_b32 s56, s41, 8
s_cmp_lt_u32 s56, 8
s_cbranch_scc1 L_role_ok
v_mov_b32 v2, {D_SURP}
global_atomic_add v4, v2, v3, {DBG} sc0 sc1
s_waitcnt vmcnt(0)
v_readfirstlane_b32 s43, v4
s_mov_b64 exec, 0x1ff
v_lshlrev_b32 v2, 2, v0
v_cmp_eq_u32 vcc, 0, v0
v_mov_b32 v5, {D_TICK0}
v_cndmask_b32 v2, v2, v5, vcc
s_mov_b32 s57, 0
L_surp:
global_load_dword v4, v2, {DBG} sc1
s_add_u32 s57, s57, 1
s_cmp_ge_u32 s57, {SPIN}
s_cbranch_scc1 L_end
s_waitcnt vmcnt(0)
s_mov_b32 s58, 0
""")
    for x in range(9):
        a(f"v_readlane_b32 s59, v4, {x}\ns_add_u32 s58, s58, s59")
    a("s_cmp_lt_u32 s58, 256\ns_cbranch_scc1 L_surp")
    for x in range(8):
        a(f"""v_readlane_b32 s59, v4, {x}
s_min_u32 s59, s59, 32
s_add_u32 s39, s59, s43
s_add_u32 s39, s39, {32*x}
s_sub_u32 s59, 32, s59
s_cmp_lt_u32 s43, s59
s_cbranch_scc1 L_surp_ok
s_sub_u32 s43, s43, s59""")
    a(f"""
s_mov_b32 s39, 0x1000
L_surp_ok:
s_mov_b64 exec, 1
s_cmp_ge_u32 s39, 32
s_cbranch_scc1 L_role_ok
v_mov_b32 v2, {D_MIX}
global_atomic_add v2, v3, {DBG} sc1
s_waitcnt vmcnt(0)
L_role_ok:
v_mov_b32 v4, s39
v_mov_b32 v2, 0
ds_write_b32 v2, v4
s_waitcnt lgkmcnt(0)
s_mov_b64 exec, -1
L_elected:
s_barrier
v_mov_b32 v2, 0
ds_read_b32 v4, v2
s_waitcnt lgkmcnt(0)
v_readfirstlane_b32 s39, v4
s_barrier
s_cmp_ge_u32 s39, 256
s_cbranch_scc1 L_end
s_cmp_ge_u32 s39, 32
s_cbranch_scc1 L_worker
""")

exec(open(__file__.replace('gen.py', 'gen_rec.py')).read())
exec(open(__file__.replace('gen.py', 'gen_worker.py')).read())

def main():
    prologue()
    recurrence()
    worker()
    a("L_end:")
    body = a.finalize(pipe=bool(OPT.get('pipe', 1)))
    ref = open('cdna_kernels/%s.s.ref' % NAME).read()
    head = ref[:ref.index('; @launch')]
    txt = head + "; @launch grid=(256,1,1) block=(256,1,1) lds=163840\n"
    txt += f""".amdgcn_target "amdgcn-amd-amdhsa--gfx950"
.text
.globl {NAME}_kernel
.p2align 8
.type {NAME}_kernel,@function
{NAME}_kernel:
{body}
s_endpgm
.section .rodata,"a"
.p2align 6
.amdhsa_kernel {NAME}_kernel
  .amdhsa_next_free_vgpr 512
  .amdhsa_next_free_sgpr 102
  .amdhsa_accum_offset 256
  .amdhsa_group_segment_fixed_size 0
  .amdhsa_kernarg_size 104
  .amdhsa_user_sgpr_count 2
  .amdhsa_user_sgpr_kernarg_segment_ptr 1
  .amdhsa_system_sgpr_workgroup_id_x 1
.end_amdhsa_kernel
"""
    open(sys.argv[1], 'w').write(txt)
    print("wrote", sys.argv[1], len(txt), "bytes")

main()
```

```python
import re

REG_RE = re.compile(r'^(-?)(?:abs\()?([vas])(?:(\d+)|\[(\d+):(\d+)\])\)?$')

def parse_reg(tok):
    tok = tok.strip().replace('|', '')
    if tok in ('vcc',): return {('s', 'vcc')}
    if tok in ('vcc_lo', 'vcc_hi'): return {('s', 'vcc')}
    if tok in ('exec', 'exec_lo', 'exec_hi'): return {('s', 'exec')}
    if tok == 'm0': return {('s', 'm0')}
    m = REG_RE.match(tok)
    if not m: return set()
    k = m.group(2)
    if m.group(3) is not None:
        return {(k, int(m.group(3)))}
    return {(k, i) for i in range(int(m.group(4)), int(m.group(5)) + 1)}

TRANS = ('v_exp_f32', 'v_log_f32', 'v_rcp_f32', 'v_rsq_f32', 'v_sqrt_f32', 'v_rcp_iflag_f32')

class Ins:
    __slots__ = ('text', 'op', 'ops', 'kind', 'r', 'w', 'mods', 'label', 'target', 'A', 'B', 'C', 'D',
                 'passes', 'dpp', 'sdata', 'states', 'cmt')
    def __init__(self, text):
        self.text = text
        self.label = None; self.target = None
        self.r = set(); self.w = set(); self.A = set(); self.B = set(); self.C = set(); self.D = set()
        self.passes = 0; self.dpp = False; self.sdata = set(); self.states = 1
        t = text.split(';')[0].strip()
        if t.endswith(':'):
            self.kind = 'label'; self.label = t[:-1]; self.op = ''; self.states = 0; return
        if not t or t.startswith('.'):
            self.kind = 'dir'; self.op = ''; self.states = 0; return
        t = re.sub(r'\s+(op_sel|op_sel_hi|neg_lo|neg_hi):\[[^\]]*\]', '', t)
        parts = t.split(None, 1)
        op = parts[0]; self.op = op
        rest = parts[1] if len(parts) > 1 else ''
        toks = [x.strip() for x in rest.split(',')] if rest else []
        mods = ''
        if toks:
            last = toks[-1].split()
            if last:
                toks[-1] = last[0]; mods = ' '.join(last[1:])
        self.ops = toks; self.mods = mods
        R = [parse_reg(x) for x in toks]
        if op == 's_nop':
            self.kind = 'nop'; self.states = int(toks[0], 0) + 1; return
        if op.startswith('s_cbranch') or op == 's_branch':
            self.kind = 'branch'; self.target = toks[0]; return
        if op == 's_endpgm':
            self.kind = 'end'; return
        if op.startswith('s_'):
            self.kind = 'salu'
            if op.startswith('s_cmp') or op in ('s_waitcnt', 's_barrier', 's_setprio', 's_sleep', 's_bitcmp1_b32', 's_bitcmp0_b32'):
                for x in R: self.r |= x
            else:
                if R: self.w |= R[0]
                for x in R[1:]: self.r |= x
                if 'saveexec' in op: self.w |= {('s', 'exec')}
            return
        if op.startswith('v_mfma') or op.startswith('v_smfmac'):
            self.kind = 'mfma'
            self.D = R[0]; self.A = R[1]; self.B = R[2]
            if op.startswith('v_smfmac'):
                self.C = R[0]; self.A = self.A | R[3]
            else:
                self.C = R[3]
            self.passes = 8 if '32x32' in op else 4
            self.r = self.A | self.B | self.C; self.w = self.D
            return
        if op.startswith('v_'):
            self.kind = 'valu'
            self.dpp = ('_dpp' in op) or ('row_' in mods) or ('quad_perm' in mods)
            if op.startswith('v_cmpx'):
                self.w |= R[0] | {('s', 'exec')}
                for x in R[1:]: self.r |= x
            elif op.startswith('v_permlane'):
                self.w |= R[0] | R[1]; self.r |= R[0] | R[1]
            elif op in ('v_add_co_u32', 'v_sub_co_u32', 'v_addc_co_u32'):
                self.w |= R[0] | R[1]
                for x in R[2:]: self.r |= x
            else:
                self.w |= R[0]
                for x in R[1:]: self.r |= x
                if op.startswith('v_fmac') or op.startswith('v_smfmac') or op.startswith('v_writelane') or (self.dpp and ('bank_mask:0xf' not in mods or 'row_mask:0xf' not in mods)):
                    self.r |= R[0]
            return
        if op == 'buffer_wbl2':
            self.kind = 'vmem'; return
        if op.startswith('buffer_') or op.startswith('global_') or op.startswith('ds_'):
            self.kind = 'ds' if op.startswith('ds_') else 'vmem'
            isbuf = op.startswith('buffer_')
            if '_load' in op or op.startswith('ds_read'):
                if 'd16' in op: self.r |= R[0]
                if 'lds' in mods.split():
                    for x in R: self.r |= x
                    self.r |= {('s', 'm0')}
                else:
                    self.w |= R[0]
                    for x in R[1:]: self.r |= x
            elif 'atomic' in op:
                ret = 'sc0' in mods.split()
                if isbuf:
                    for x in R: self.r |= x
                    if ret: self.w |= R[0]
                else:
                    if ret:
                        self.w |= R[0]
                        for x in R[1:]: self.r |= x
                    else:
                        for x in R: self.r |= x
            else:
                for x in R: self.r |= x
                if 'x4' in op or 'x3' in op:
                    self.sdata = R[0] if isbuf else R[1]
            return
        raise ValueError('unknown instruction: ' + text)

def vec(s): return {x for x in s if x[0] in 'va'}
def sca(s): return {x for x in s if x[0] == 's'}

def need(p, c):
    n = 0
    if p.kind == 'valu':
        wv = vec(p.w); ws = sca(p.w)
        if c.kind == 'valu':
            if wv & c.r:
                if c.op.startswith('v_readlane') or c.op.startswith('v_readfirstlane'): n = max(n, 1)
                if c.dpp: n = max(n, 2)
                if c.op.startswith('v_permlane'): n = max(n, 2)
                if p.op in TRANS: n = max(n, 1)
            if ('s', 'exec') in ws:
                if c.dpp: n = max(n, 5)
                if c.op.startswith('v_readlane') or c.op.startswith('v_readfirstlane') or c.op.startswith('v_writelane') or c.op.startswith('v_permlane'): n = max(n, 4)
                if ('s', 'exec') in c.r: n = max(n, 2)
            if (ws - {('s', 'exec')}) & c.r:
                n = max(n, 4 if (c.op.startswith('v_readlane') or c.op.startswith('v_writelane')) else 2)
        elif c.kind == 'mfma':
            if wv & c.r: n = max(n, 2)
            if ('s', 'exec') in ws: n = max(n, 4)
        elif c.kind in ('vmem',):
            if ws & c.r: n = max(n, 5)
            if ('s', 'exec') in ws: n = max(n, 0)
    elif p.kind == 'mfma':
        big = 8 if p.passes == 4 else 12
        if c.kind == 'mfma':
            if p.D & (c.A | c.B): n = max(n, big)
            if p.D & c.C:
                if not (p.D == c.C and p.passes == c.passes): n = max(n, 6 if p.passes == 4 else 10)
            elif p.D & c.D:
                n = max(n, big)
        elif c.kind in ('valu', 'vmem', 'ds'):
            if p.D & (c.r | c.w): n = max(n, big)
            if c.kind == 'valu' and (p.C & c.w): n = max(n, 3 if p.passes == 4 else 7)
    elif p.kind == 'vmem':
        if p.sdata & c.w:
            n = max(n, 2 if c.kind in ('valu', 'mfma') else 1)
    elif p.kind == 'salu':
        if ('s', 'm0') in p.w and c.kind == 'vmem' and ('s', 'm0') in c.r: n = max(n, 1)
    return n

MAXD = 13
def mslots(q):
    return 2 if '16x16x16' in q.op else q.passes

class Asm:
    def __init__(self):
        self.lines = []
    def __call__(self, text):
        for ln in text.split('\n'):
            ln = ln.strip()
            if ln: self.lines.append(ln)
    def finalize(self, verbose=False, pipe=True):
        ins = [Ins(l) for l in self.lines if not l.startswith(';')]
        pad = [0] * len(ins)
        labels = {x.label: i for i, x in enumerate(ins) if x.kind == 'label'}
        preds = {}
        for i, x in enumerate(ins):
            if x.kind == 'branch':
                preds.setdefault(labels[x.target], []).append(i)
        changed = True
        while changed:
            changed = False
            for i, c in enumerate(ins):
                if c.kind not in ('valu', 'mfma', 'vmem', 'ds', 'salu'): continue
                req = 0
                stack = [(i - 1, pad[i])]; seen = {}
                while stack:
                    j, d = stack.pop()
                    if j < 0 or d >= MAXD: continue
                    if seen.get(j, 99) <= d: continue
                    seen[j] = d
                    p = ins[j]
                    if p.kind == 'label':
                        for b in preds.get(j, []): stack.append((b, d))
                        k = j - 1
                        while k >= 0 and ins[k].kind == 'dir': k -= 1
                        if k >= 0 and ins[k].op not in ('s_branch', 's_endpgm'): stack.append((j - 1, d))
                        continue
                    if p.kind == 'end': continue
                    nn = need(p, c)
                    if nn > d and pipe and p.kind == 'mfma':
                        if j < i and all(ins[k].kind not in ('label', 'branch') for k in range(j + 1, i)):
                            t = 0; last = 0; lastp = mslots(p)
                            for k in range(j + 1, i + 1):
                                q = ins[k]
                                if q.kind == 'dir': continue
                                t += pad[k]
                                tq = t + 1
                                if q.kind == 'mfma':
                                    tq = max(tq, last + lastp); last = tq; lastp = mslots(q)
                                if k == i: dd = tq - 1
                                t = tq + q.states - 1
                            if nn > dd: req = max(req, nn - dd)
                        else: req = max(req, nn - d)
                    elif nn > d: req = max(req, nn - d)
                    stack.append((j - 1, d + p.states + pad[j]))
                if req > 0:
                    pad[i] += req; changed = True
                    if verbose: print('nop', req, 'before', c.text)
        out = []
        for i, x in enumerate(ins):
            n = pad[i]
            while n > 0:
                k = min(n, 16); out.append('s_nop %d' % (k - 1)); n -= k
            out.append(x.text)
        res = []; i = 0
        while i < len(out):
            if out[i].startswith('.;ab'):
                j = out.index('.;ae', i)
                res += place(out[i + 1:j], int(out[i].split()[1]), verbose); i = j + 1
            else: res.append(out[i]); i += 1
        res = [l.replace(' ;L', '') for l in res if l != '.;nc']
        if any(l.startswith('.;') for l in res): res = layout(res)
        return '\n'.join(res)

SOPP = ('s_nop', 's_waitcnt', 's_barrier', 's_branch', 's_sleep', 's_endpgm', 's_setprio')
V3 = ('v_cvt_pk', 'v_max3', 'v_or3', 'v_bitop3', 'v_bfi', 'v_perm', 'v_add3', 'v_lshl_add', 'v_lshl_or', 'v_and_or', 'v_pk_', 'v_mfma', 'v_smfmac',
      'v_accvgpr', 'v_writelane', 'v_readlane', 'v_bfe')
FLEX = ('v_exp_f32', 'v_rcp_f32', 'v_mov_b64', 'v_mov_b32', 'v_cmp_', 'v_max_u32', 'v_lshlrev_b32', 'v_and_b32')
def literal(t):
    try: v = int(t, 0)
    except ValueError: return False
    return not -16 <= v <= 64
def isize(x):
    op = x.op
    if x.kind in ('label', 'dir'): return 0, False
    if op in SOPP or op.startswith('s_cbranch'): return 4, op == 's_nop' and x.states > 1
    if op.startswith('s_mem') or op.startswith('s_load'): return 8, False
    if op.startswith('s_'): return (8 if any(literal(t) for t in x.ops) else 4), False
    if x.kind in ('ds', 'vmem', 'mfma') or x.dpp or op.startswith(V3) or '|' in x.text or op.endswith('_e64'): return 8, False
    if any(literal(t) for t in x.ops): return 8, False
    assert op.startswith(FLEX) or op.startswith('v_permlane'), x.text
    assert len(x.ops) < 3 or x.ops[2].startswith('v'), x.text
    return 4, op.startswith(FLEX)
def wide(x):
    if x.op == 's_nop':
        h = x.states // 2
        return ['s_nop %d' % (h - 1), 's_nop %d' % (x.states - h - 1)]
    return [x.text.replace(x.op, x.op + '_e64', 1)]
def place(lines, ph0, verbose=False, beam=400):
    ins = [Ins(l) for l in lines]
    NEG = -99
    def step(st, x, size, free=False):
        pos, t, tv, pp, a1, a2, vc = st
        w0 = pos // 32; w1 = (pos + size - 1) // 32; cur = (pos - 1) // 32 if pos else -1
        ti = t
        if x is not None:
            if x.kind in ('valu', 'mfma'): ti = max(ti, tv)
            if x.kind == 'mfma': ti = max(ti, pp)
            if x.op.startswith('s_cbranch_vcc'): ti = max(ti, vc)
        if w1 > cur: ti = max(ti, a1)
        n = 1
        if x is not None:
            if x.kind == 'nop': n = x.states if size == 4 else x.states
            elif x.op.startswith(TRANS): n = 2
            elif x.kind == 'mfma':
                n = 2; pp = ti + mslots(x); tv = ti + (3 if x.op.startswith('v_smfmac') else 2)
            elif x.op == 'ds_write_b128': n = 6
            elif x.op == 'ds_write_b64': n = 3
            elif x.op == 's_barrier': n = 3
            if x.op.startswith('v_cmp'): vc = ti + 6
        te = ti + n
        if w1 > cur:
            a1 = (te + 4) if w0 == cur else a2
            a2 = NEG
        if (pos + size) % 32 == 0: a2 = te + 4
        if x is not None and x.kind == 'branch': a1 = max(a1, te + 4) if (pos + size) % 32 else max(a1, te + 4)
        if x is not None and ';L' in x.text: a1 = NEG; a2 = NEG if a2 != NEG else a2; tv = pp = vc = NEG
        if free: te = t if max(a1, a2) <= t else te
        return (pos + size, te, tv, pp, a1, a2, vc)
    def key(st):
        pos, t, tv, pp, a1, a2, vc = st
        return (pos % 32,) + tuple(max(v - t, 0) for v in (tv, pp, a1, a2, vc))
    phases = range(8) if ph0 < 0 else [ph0 % 8]
    cand = [((64 + 4 * p, 0, NEG, NEG, NEG, NEG, NEG), 0, (p,)) for p in phases]
    cand = [((s[0], 0, NEG, NEG, NEG, 4 if s[0] % 32 == 0 else NEG, NEG) if s[0] % 32 == 0 else (s[0], 0, NEG, NEG, 4, NEG, NEG), e, c) for s, e, c in cand]
    base = None
    nc = False
    step0 = step
    def slack(st, x, size, free=False): return (st[0] + size, st[1], NEG, NEG, NEG, NEG, NEG)
    for x in ins:
        sz, fl = isize(x)
        if x.text == '.;nc': nc = True
        if ';L' in x.text: nc = False
        step = slack if nc else step0
        if sz == 0: continue
        nxt = {}
        def push(st, e, c):
            k = key(st)
            if k not in nxt or (st[1], e) < (nxt[k][0][1], nxt[k][1]): nxt[k] = (st, e, c)
        for st, e, c in cand:
            push(step(st, x, sz), e, c + (0,))
            if fl:
                if x.op == 's_nop':
                    a_, b_ = [Ins(t) for t in wide(x)]
                    push(step(step(st, a_, 4), b_, 4), e + 1, c + (1,))
                else: push(step(st, x, 8), e + 1, c + (1,))
            push(step(step(st, None, 4, free=';L' in x.text), x, sz), e + 2, c + (2,))
        cand = sorted(nxt.values(), key=lambda z: (z[0][1], z[1]))[:beam]
    st, e, c = cand[0]
    if verbose or True:
        ref = []
        for p in range(8):
            s_ = (64 + 4 * p, 0, NEG, NEG, NEG if p == 0 else 4, 4 if p == 0 else NEG, NEG)
            nc = False
            for x in ins:
                sz, fl = isize(x)
                if x.text == '.;nc': nc = True
                if ';L' in x.text: nc = False
                if sz: s_ = (slack if nc else step0)(s_, x, sz)
            ref.append(s_[1])
        print('place', lines[0], 'slots', st[1], 'edits', e, 'phase', c[0], 'unedited', ref)
    out = ['.p2align 6'] + (['.fill %d, 4, 0xbf800000' % c[0]] if c[0] else [])
    k = 1
    for x in ins:
        sz, fl = isize(x)
        if sz == 0:
            if x.text != '.;nc': out.append(x.text)
            continue
        if c[k] == 1: out += wide(x)
        elif c[k] == 2: out += ['s_nop 0', x.text]
        else: out.append(x.text)
        k += 1
    return out

import subprocess, tempfile, os
LINK = "s[98:99]"
def sizes(lines):
    d = tempfile.mkdtemp(); f = os.path.join(d, "z.s")
    txt = ['.amdgcn_target "amdgcn-amd-amdhsa--gfx950"', '.text']
    for i, l in enumerate(lines):
        if l.startswith('.') : continue
        if l.endswith(':'): txt.append(l); continue
        if l.startswith('s_call_b64'): l = 's_nop 0'
        txt.append('Zz%d:' % i); txt.append(l)
    txt.append('Zz%d:' % len(lines))
    open(f, 'w').write('\n'.join(txt) + '\n')
    subprocess.run(["clang", "-c", "-x", "assembler", "-target", "amdgcn-amd-amdhsa", "-mcpu=gfx950", f, "-o", f + ".o"], check=True)
    o = subprocess.run(["llvm-readelf", "-s", f + ".o"], capture_output=True, text=True, check=True).stdout
    ad = sorted((int(x.split()[7][2:]), int(x.split()[1], 16)) for x in o.splitlines() if len(x.split()) == 8 and x.split()[7].startswith('Zz'))
    os.remove(f); os.remove(f + ".o"); os.rmdir(d)
    return {i: ad[k + 1][1] - a for k, (i, a) in enumerate(ad[:-1])}
def layout(lines):
    sz = sizes(lines)
    out = []; pos = 0; auto = None; names = {}; chains = []
    def jumped():
        for l in reversed(out):
            if l.endswith(':'): return False
            if not l.startswith('.') or l.startswith('.;s '): return l.split()[0] in ('s_branch', 's_endpgm', 's_setpc_b64', '.;s')
        return False
    def stub(ns, page):
        nonlocal pos
        held = []
        while page and out[-1].endswith(':'): held.insert(0, out.pop())
        skip = not jumped()
        if skip: out.append('s_branch L_sk_' + ns[0]); pos += 4
        if page: out.append('.p2alignl 12, 0xbf810000'); pos = -(-pos // 4096) * 4096
        for n in ns: names[n] = pos; out.append('.;s ' + n); pos += 4
        if skip: out.append('L_sk_%s:' % ns[0])
        out.extend(held)
    for i, l in enumerate(lines):
        t = l.split()
        if t[0] == '.;page': assert jumped(), l; out.append('.p2alignl 12, 0xbf810000'); pos = -(-pos // 4096) * 4096
        elif t[0] == '.;fit':
            if pos % 4096 + int(t[1]) > 4096: assert jumped(); out.append('.p2alignl 12, 0xbf810000'); pos = -(-pos // 4096) * 4096
        elif t[0] == '.;stub': stub(t[1:], False)
        elif t[0] == '.;auto': auto = [t[1:], 0]
        elif t[0] == '.;autoend': auto = None
        elif t[0] == '.;chain': chains.append(t[1:])
        elif t[0] == '.p2align': out.append(l); k = 1 << int(t[1]); pos = -(-pos // k) * k
        elif t[0] == '.fill': out.append(l); pos += int(t[1][:-1]) * int(t[2][:-1])
        elif l.endswith(':'): out.append(l)
        else:
            assert not l.startswith('.'), l
            if auto and pos % 4096 + sz[i] + 4 > 4096: stub([p + str(auto[1]) for p in auto[0]], True); auto[1] += 1
            out.append(l); pos += sz[i]
    nxt = {}; head = {}; bare = []
    for c in chains:
        m = [n for n in c[1:] if n in names]
        for a, b in zip(m, m[1:] + [None]): assert a not in nxt, a; nxt[a] = b
        if m: head[m[0]] = c[0]
        else: bare.append(c[0])
    res = []
    for l in out:
        if l.startswith('.;s '):
            n = l[4:]
            if n in head: res.append('L_ch_%s:' % head[n])
            res += ['L_sb_%s:' % n, 's_branch L_sb_' + nxt[n] if nxt.get(n) else 's_setpc_b64 ' + LINK]
        elif l == 'L_end:' and bare:
            res += ['s_endpgm'] + ['L_ch_%s:' % n for n in bare] + ['s_setpc_b64 ' + LINK, l]
        else: res.append(l)
    print('stubs', ' '.join('%s@%x' % kv for kv in names.items()), 'left out', [n for n in names if n not in nxt], 'size %x' % pos)
    return res
def visit(c): return "s_call_b64 %s, L_ch_%s" % (LINK, c)

_cp = [0]
def code_fetch(lo, hi, part, vA, vD, sh=13, lane="v0", n=1):
    _cp[0] += 1; pc = "L_pc%d" % _cp[0]
    t = f"s_getpc_b64 s[56:57]\n{pc}:\n"
    if callable(lo): t += lo(pc) + "\n"
    else: t += f"s_lshl_b32 s58, {part}, {sh}\ns_add_u32 s58, s58, {lo}-{pc}\n" if part else f"s_mov_b32 s58, {lo}-{pc}\n"
    for j in range(n):
        if j: t += "s_add_u32 s58, s58, 0x2000\n"
        t += f"""v_lshl_add_u32 v{vA}, {lane}, 7, s58
v_min_u32 v{vA}, {hi if hi[0] == 's' else hi + '-' + pc}, v{vA}
v_mov_b32 v{vA+1}, s57
v_add_co_u32 v{vA}, vcc, s56, v{vA}
v_addc_co_u32 v{vA+1}, vcc, 0, v{vA+1}, vcc
global_load_dword v{vD}, v[{vA}:{vA+1}], off
"""
    return t
```

```python
import sys, math, struct
from asmlib import Asm, visit, code_fetch

NAME = "parallel_sum__memory_aug_recurrent_mem_tr__dense_activation_relu__prompt"
OPT = dict(stamps=False, nsteps=63)
for a_ in sys.argv[2:]:
    k_, v_ = a_.split('='); OPT[k_] = int(v_)

F_XN, F_S1, F_KC, F_KL, F_PG, F_O = 0x0, 0x400, 0x800, 0x1000, 0x1800, (0x1c00 if OPT.get('sp') else 0x2000)
FLAG_BYTES = 0x6000
NCLR = FLAG_BYTES // 4096 * (2 if OPT.get('tg', 0) == 3 else 1)
PART, XN, MEM = 0x100000, 0x200000, 0x400000
PXB, RB = 0x480000, 0x580000
QB, KB, VB, OB, HB, KVM = 0x1000000, 0x2000000, 0x3000000, 0x4000000, 0x5000000, 0x6040000
STAMP = 0x8000000
D_SURP, D_CLR, D_TICK0, D_RV, D_MIX = 40, 64, 128, 132, 136
SPIN = 1 << 19
C1 = struct.unpack('<I', struct.pack('<f', 128 ** -0.5 * math.log2(math.e)))[0]
PLO, PHI = 0x05040100, 0x07060302

a = Asm()
CP = OPT.get('cp', 0)
IC = OPT.get('ic', 0)
uid = [0]
def L(p):
    uid[0] += 1
    return "L_%s_%d" % (p, uid[0])

class Q:
    def __init__(self, name, cap): self.n = name; self.q = []; self.cap = cap
    def issue(self, tag=None): self.q.append(tag)
    def wait(self, tag, long=False):
        idx = max(i for i, t in enumerate(self.q) if t == tag)
        n = len(self.q) - 1 - idx
        assert n <= self.cap, (self.n, n)
        a("s_waitcnt %s(%d)" % (self.n, n) + (" ;L" if long else "")); self.q = self.q[idx + 1:]
    def has(self, tag): return tag in self.q
    def drain(self, long=False):
        a("s_waitcnt %s(0)" % self.n + (" ;L" if long else "")); self.q = []

def vr(b, n=1, k='v'): return "%s%d" % (k, b) if n == 1 else "%s[%d:%d]" % (k, b, b + n - 1)

WS, SX_, SO, SW0, SW1, SW2, SW3, SM0 = "s[4:7]", "s[8:11]", "s[12:15]", "s[16:19]", "s[20:23]", "s[24:27]", "s[28:31]", "s[32:35]"
DBG = "s[36:37]"

def srd(dst, lo, hi, size):
    a("s_mov_b32 s%d, s%d\ns_mov_b32 s%d, s%d\ns_mov_b32 s%d, 0x%x\ns_mov_b32 s%d, 0x20000" % (dst, lo, dst + 1, hi, dst + 2, size, dst + 3))

def wait_flags(vaddr, vdst, soff, cnt="s57", const=0, thr="0", nap=0):
    l = L("wf")
    a(f"s_mov_b32 {cnt}, 0")
    a(f"{l}:")
    a(f"buffer_load_dword {vdst}, {vaddr}, {WS}, {soff} offen offset:{const} sc1")
    a(f"s_add_u32 {cnt}, {cnt}, 1\ns_cmp_ge_u32 {cnt}, {SPIN}\ns_cbranch_scc1 L_end")
    a(f"s_waitcnt vmcnt(0)\nv_cmp_ge_u32 vcc, {thr}, {vdst}")
    if nap:
        l2 = L("wfx")
        a(f"s_cbranch_vccz {l2}\ns_sleep {nap}\ns_branch {l}\n{l2}:")
    else:
        a(f"s_cbranch_vccnz {l}")

def wait_dbg(off, target, vt0, vt1, cnt="s57"):
    l = L("wd")
    a(f"s_mov_b32 {cnt}, 0\nv_mov_b32 {vt0}, {off}")
    a(f"{l}:")
    a(f"global_load_dword {vt1}, {vt0}, {DBG} sc1")
    a(f"s_add_u32 {cnt}, {cnt}, 1\ns_cmp_ge_u32 {cnt}, {SPIN}\ns_cbranch_scc1 L_end")
    a(f"s_waitcnt vmcnt(0)\nv_cmp_gt_u32 vcc, {target}, {vt1}\ns_cbranch_vccnz {l}")

def store_flag(vdata, soff, const=0):
    a(f"s_mov_b64 exec, 1\nbuffer_store_dword {vdata}, off, {WS}, {soff} offset:{const} sc1\ns_mov_b64 exec, -1")

def prologue():
    EP = OPT.get('ep', 0)
    def early():
        t = ""
        for j in range(EP):
            g = j // 4
            t += f"s_mov_b32 s56, 0x{(64*(j%4) + 256*(g%2) + 32*((g//2)%2) + 4*(g//4))*8192:x}\nbuffer_load_dwordx4 v[72:75], v6, s[16:19], s56 offen\n"
        return t
    EARLY1, EARLY0 = "", "s_waitcnt vmcnt(0)"
    if EP:
        EARLY1 = f"""s_mov_b32 s16, s44
s_mov_b32 s17, s45
s_mov_b32 s18, 0x400000
s_mov_b32 s19, 0x20000
s_bfe_u32 s56, s2, 0x50003
s_lshl_b32 s56, s56, 2
s_add_u32 s56, s56, s38
s_and_b32 s58, s56, 7
s_lshl_b32 s58, s58, 10
s_bfe_u32 s59, s56, 0x20003
s_lshl_b32 s59, s59, 13
s_add_u32 s58, s58, s59
s_bfe_u32 s59, s56, 0x20005
s_lshl_b32 s59, s59, 16
s_add_u32 s58, s58, s59
v_lshlrev_b32 v6, 4, v0
v_add_u32 v6, s58, v6
s_cmp_eq_u32 s38, 0
s_cbranch_scc1 L_early1
s_cmp_lg_u32 s40, 0
s_cbranch_scc1 L_early1
{early()}
L_early1:"""
        EARLY0 = f"""s_cmp_lg_u32 s40, 0
s_cbranch_scc1 L_early0
s_mov_b64 exec, -1
{early()}
s_mov_b64 exec, 1
s_waitcnt vmcnt({EP})
s_branch L_early2
L_early0:
s_waitcnt vmcnt(0)
L_early2:"""
    EQ = OPT.get('eq', 0)
    if EQ:
        t = ""
        for j in range(3 * EQ):
            t += f"""v_add_u32 v7, 0x{(j%3)*768*1024:x}, v6
v_and_b32 v8, 0x7fff, v7
v_lshrrev_b32 v7, 15, v7
v_lshl_add_u32 v7, v7, 16, v8
buffer_load_dwordx4 v[72:75], v7, s[16:19], {"s56" if j >= 3 else "0"} offen
"""
        EARLY1 = f"""s_cmp_eq_u32 s38, 0
s_cbranch_scc1 L_early1
s_mov_b32 s16, s44
s_mov_b32 s17, s45
s_mov_b32 s18, 0x400000
s_mov_b32 s19, 0x20000
s_mul_i32 s56, s2, 3
s_add_u32 s56, s56, s38
s_sub_u32 s56, s56, 1
s_lshl_b32 s56, s56, 10
v_lshlrev_b32 v6, 4, v0
v_add_u32 v6, s56, v6
s_mov_b32 s56, 0x8000
{t}
L_early1:"""
    WHO = f"""s_getreg_b32 s40, hwreg(HW_REG_XCC_ID, 0, 4)
v_lshrrev_b32 v1, 6, v0
v_and_b32 v0, 63, v0
{"s_xor_b32 s40, s40, %d" % OPT['rx'] if OPT.get('rx') else ""}
v_readfirstlane_b32 s38, v1"""
    V0 = ""
    if IC & 24:
        V0 = WHO + "\ns_cmp_eq_u32 s38, 0\ns_cbranch_scc1 L_v0\ns_cmp_lg_u32 s40, 0\ns_cbranch_scc1 L_v0w\n"
        pick = lambda n, c: f"s_cmp_lg_u32 s56, {n}\ns_cbranch_scc1 L_v0{c}\n{visit(c)}\ns_branch L_v0\nL_v0{c}:\n"
        if IC & 8:
            V0 += "s_bfe_u32 s56, s2, 0x10003\ns_mul_i32 s56, s56, 3\ns_add_u32 s56, s56, s38\n"
            for n in range(1, 7): V0 += pick(n, "r%d" % n)
            V0 += ".;chain r1 a0 l0\n.;chain r2 a1 l1\n.;chain r3 a2 l2\n.;chain r4 a3 l3\n.;chain r5 f\n.;chain r6 a4\n"
        V0 += "s_branch L_v0\nL_v0w:\n"
        if IC & 16:
            V0 += "s_mov_b32 s56, s38\n"
            for n in range(1, 4): V0 += pick(n, "w%d" % n)
            V0 += ".;chain w1 wk\n.;chain w2 c0\n.;chain w3 ln\n"
        V0 += "L_v0:"; WHO = ""
    if CP & 1:
        assert not IC & 24
        K = OPT.get('cpk', 1); NL = {1: 2, 2: 1}[K]
        def lo(pc):
            t = f"s_sub_u32 s58, s38, 1\n"
            if K == 2: t += "s_bfe_u32 s59, s2, 0x10003\ns_mul_i32 s59, s59, 3\ns_add_u32 s58, s58, s59\n"
            t += f"""s_lshl_b32 s58, s58, {13 if K == 2 else 14}
s_mov_b32 s60, L_worker-{pc}
s_cmp_eq_u32 s40, 0
s_cselect_b32 s59, 64, s60
s_cselect_b32 s60, s60, L_end-{pc}
s_add_u32 s58, s58, s59"""
            return t
        V0 = WHO + "\ns_cmp_eq_u32 s38, 0\ns_cbranch_scc1 L_v0\n" + (f"s_cmp_ge_u32 s2, {OPT['cpn']}\ns_cbranch_scc1 L_v0\n" if OPT.get('cpn') else "") + code_fetch(lo, "s60", None, 2, 192, n=NL) + "L_v0:"; WHO = ""
    a(f"""
s_cmp_ge_u32 s2, 256
s_cbranch_scc1 L_end
{"s_memrealtime s[100:101]" if OPT['stamps'] == 2 else ""}
{V0}
s_load_dwordx2 s[8:9], s[0:1], 0
s_load_dwordx2 s[32:33], s[0:1], 8
s_load_dwordx8 s[44:51], s[0:1], 16
s_load_dwordx4 s[52:55], s[0:1], 64
s_load_dwordx2 s[12:13], s[0:1], 80
s_load_dwordx2 s[36:37], s[0:1], 88
s_load_dwordx2 s[4:5], s[0:1], 96
{WHO}
s_mov_b32 s6, 0x10000000
s_mov_b32 s7, 0x20000
s_mov_b32 s10, 0x200000
s_mov_b32 s11, 0x20000
s_mov_b32 s14, 0x200000
s_mov_b32 s15, 0x20000
s_mov_b32 s34, 0x2000
s_mov_b32 s35, 0x20000
s_waitcnt lgkmcnt(0)
{EARLY1}
s_cmp_lg_u32 s38, 0
s_cbranch_scc1 L_elected
s_min_u32 s41, s40, 8
s_lshl_b32 s42, s41, 2
s_cmp_eq_u32 s41, 0
s_cselect_b32 s42, {D_TICK0}, s42
v_mov_b32 v2, s42
v_mov_b32 v3, 1
s_mov_b64 exec, 1
global_atomic_add v4, v2, v3, {DBG} sc0 sc1
{EARLY0}
v_readfirstlane_b32 s43, v4
s_lshl_b32 s39, s41, 5
s_add_u32 s39, s39, s43
s_cmp_lt_u32 s43, 32
s_cselect_b32 s56, s41, 8
s_cmp_lt_u32 s56, 8
s_cbranch_scc1 L_role_ok
v_mov_b32 v2, {D_SURP}
global_atomic_add v4, v2, v3, {DBG} sc0 sc1
s_waitcnt vmcnt(0)
v_readfirstlane_b32 s43, v4
s_mov_b64 exec, 0x1ff
v_lshlrev_b32 v2, 2, v0
v_cmp_eq_u32 vcc, 0, v0
v_mov_b32 v5, {D_TICK0}
v_cndmask_b32 v2, v2, v5, vcc
s_mov_b32 s57, 0
L_surp:
global_load_dword v4, v2, {DBG} sc1
s_add_u32 s57, s57, 1
s_cmp_ge_u32 s57, {SPIN}
s_cbranch_scc1 L_end
s_waitcnt vmcnt(0)
s_mov_b32 s58, 0
""")
    for x in range(9):
        a(f"v_readlane_b32 s59, v4, {x}\ns_add_u32 s58, s58, s59")
    a("s_cmp_lt_u32 s58, 256\ns_cbranch_scc1 L_surp")
    for x in range(8):
        a(f"""v_readlane_b32 s59, v4, {x}
s_min_u32 s59, s59, 32
s_add_u32 s39, s59, s43
s_add_u32 s39, s39, {32*x}
s_sub_u32 s59, 32, s59
s_cmp_lt_u32 s43, s59
s_cbranch_scc1 L_surp_ok
s_sub_u32 s43, s43, s59""")
    a(f"""
s_mov_b32 s39, 0x1000
L_surp_ok:
s_mov_b64 exec, 1
s_cmp_ge_u32 s39, 32
s_cbranch_scc1 L_role_ok
v_mov_b32 v2, {D_MIX}
global_atomic_add v2, v3, {DBG} sc1
s_waitcnt vmcnt(0)
L_role_ok:
v_mov_b32 v4, s39
v_mov_b32 v2, 0
ds_write_b32 v2, v4
s_waitcnt lgkmcnt(0)
s_mov_b64 exec, -1
L_elected:
{"s_waitcnt vmcnt(0)" if CP & 1 and OPT.get('cpw', 0) else ""}
s_barrier
v_mov_b32 v2, 0
ds_read_b32 v4, v2
s_waitcnt lgkmcnt(0)
v_readfirstlane_b32 s39, v4
s_barrier
s_cmp_ge_u32 s39, 256
s_cbranch_scc1 L_end
s_cmp_ge_u32 s39, 32
s_cbranch_scc1 L_worker
""")

exec(open(__file__.replace('gen.py', 'gen_rec.py')).read())
exec(open(__file__.replace('gen.py', 'gen_worker.py')).read())

def main():
    prologue()
    recurrence()
    worker()
    a("L_end:")
    body = a.finalize(pipe=bool(OPT.get('pipe', 1)))
    ref = open('cdna_kernels/%s.s.ref' % NAME).read()
    head = ref[:ref.index('; @launch')]
    txt = head + "; @launch grid=(256,1,1) block=(256,1,1) lds=163840\n"
    txt += f""".amdgcn_target "amdgcn-amd-amdhsa--gfx950"
.text
{".p2alignl 12, 0xbf810000" + chr(10) + ".fill 832, 4, 0xbf810000" + chr(10) if IC else ""}.globl {NAME}_kernel
.p2align 8
.type {NAME}_kernel,@function
{NAME}_kernel:
{body}
s_endpgm
.section .rodata,"a"
.p2align 6
.amdhsa_kernel {NAME}_kernel
  .amdhsa_next_free_vgpr 512
  .amdhsa_next_free_sgpr 102
  .amdhsa_accum_offset 256
  .amdhsa_group_segment_fixed_size 0
  .amdhsa_kernarg_size 104
  .amdhsa_user_sgpr_count 2
  .amdhsa_user_sgpr_kernarg_segment_ptr 1
  .amdhsa_system_sgpr_workgroup_id_x 1
.end_amdhsa_kernel
"""
    open(sys.argv[1], 'w').write(txt)
    print("wrote", sys.argv[1], len(txt), "bytes")

main()
```

```python
import sys, math, struct
from asmlib import Asm, visit, code_fetch

NAME = "parallel_sum__memory_aug_recurrent_mem_tr__dense_activation_relu__prompt"
OPT = dict(stamps=False, nsteps=63)
for a_ in sys.argv[2:]:
    k_, v_ = a_.split('='); OPT[k_] = int(v_)

F_XN, F_S1, F_KC, F_KL, F_PG, F_O = 0x0, 0x400, 0x800, 0x1000, 0x1800, (0x1c00 if OPT.get('sp') else 0x2000)
FLAG_BYTES = 0x6000
NCLR = FLAG_BYTES // 4096 * (2 if OPT.get('tg', 0) == 3 else 1)
PART, XN, MEM = 0x100000, 0x200000, 0x400000
PXB, RB = 0x480000, 0x580000
QB, KB, VB, OB, HB, KVM = 0x1000000, 0x2000000, 0x3000000, 0x4000000, 0x5000000, 0x6040000
STAMP = 0x8000000
D_SURP, D_CLR, D_TICK0, D_RV, D_MIX = 40, 64, 128, 132, 136
SPIN = 1 << 19
C1 = struct.unpack('<I', struct.pack('<f', 128 ** -0.5 * math.log2(math.e)))[0]
PLO, PHI = 0x05040100, 0x07060302

a = Asm()
CP = OPT.get('cp', 0)
IC = OPT.get('ic', 0)
uid = [0]
def L(p):
    uid[0] += 1
    return "L_%s_%d" % (p, uid[0])

class Q:
    def __init__(self, name, cap): self.n = name; self.q = []; self.cap = cap
    def issue(self, tag=None): self.q.append(tag)
    def wait(self, tag, long=False):
        idx = max(i for i, t in enumerate(self.q) if t == tag)
        n = len(self.q) - 1 - idx
        assert n <= self.cap, (self.n, n)
        a("s_waitcnt %s(%d)" % (self.n, n) + (" ;L" if long else "")); self.q = self.q[idx + 1:]
    def has(self, tag): return tag in self.q
    def drain(self, long=False):
        a("s_waitcnt %s(0)" % self.n + (" ;L" if long else "")); self.q = []

def vr(b, n=1, k='v'): return "%s%d" % (k, b) if n == 1 else "%s[%d:%d]" % (k, b, b + n - 1)

WS, SX_, SO, SW0, SW1, SW2, SW3, SM0 = "s[4:7]", "s[8:11]", "s[12:15]", "s[16:19]", "s[20:23]", "s[24:27]", "s[28:31]", "s[32:35]"
DBG = "s[36:37]"

def srd(dst, lo, hi, size):
    a("s_mov_b32 s%d, s%d\ns_mov_b32 s%d, s%d\ns_mov_b32 s%d, 0x%x\ns_mov_b32 s%d, 0x20000" % (dst, lo, dst + 1, hi, dst + 2, size, dst + 3))

def wait_flags(vaddr, vdst, soff, cnt="s57", const=0, thr="0", nap=0):
    l = L("wf")
    a(f"s_mov_b32 {cnt}, 0")
    a(f"{l}:")
    a(f"buffer_load_dword {vdst}, {vaddr}, {WS}, {soff} offen offset:{const} sc1")
    a(f"s_add_u32 {cnt}, {cnt}, 1\ns_cmp_ge_u32 {cnt}, {SPIN}\ns_cbranch_scc1 L_end")
    a(f"s_waitcnt vmcnt(0)\nv_cmp_ge_u32 vcc, {thr}, {vdst}")
    if nap:
        l2 = L("wfx")
        a(f"s_cbranch_vccz {l2}\ns_sleep {nap}\ns_branch {l}\n{l2}:")
    else:
        a(f"s_cbranch_vccnz {l}")

def wait_dbg(off, target, vt0, vt1, cnt="s57"):
    l = L("wd")
    a(f"s_mov_b32 {cnt}, 0\nv_mov_b32 {vt0}, {off}")
    a(f"{l}:")
    a(f"global_load_dword {vt1}, {vt0}, {DBG} sc1")
    a(f"s_add_u32 {cnt}, {cnt}, 1\ns_cmp_ge_u32 {cnt}, {SPIN}\ns_cbranch_scc1 L_end")
    a(f"s_waitcnt vmcnt(0)\nv_cmp_gt_u32 vcc, {target}, {vt1}\ns_cbranch_vccnz {l}")

def store_flag(vdata, soff, const=0):
    a(f"s_mov_b64 exec, 1\nbuffer_store_dword {vdata}, off, {WS}, {soff} offset:{const} sc1\ns_mov_b64 exec, -1")

def surplus():
    a(f"""
v_mov_b32 v2, {D_SURP}
global_atomic_add v4, v2, v3, {DBG} sc0 sc1
s_waitcnt vmcnt(0)
v_readfirstlane_b32 s43, v4
s_mov_b64 exec, 0x1ff
v_lshlrev_b32 v2, 2, v0
v_cmp_eq_u32 vcc, 0, v0
v_mov_b32 v5, {D_TICK0}
v_cndmask_b32 v2, v2, v5, vcc
s_mov_b32 s57, 0
L_surp:
global_load_dword v4, v2, {DBG} sc1
s_add_u32 s57, s57, 1
s_cmp_ge_u32 s57, {SPIN}
s_cbranch_scc1 L_end
s_waitcnt vmcnt(0)
s_mov_b32 s58, 0
""")
    for x in range(9):
        a(f"v_readlane_b32 s59, v4, {x}\ns_add_u32 s58, s58, s59")
    a("s_cmp_lt_u32 s58, 256\ns_cbranch_scc1 L_surp")
    for x in range(8):
        a(f"""v_readlane_b32 s59, v4, {x}
s_min_u32 s59, s59, 32
s_add_u32 s39, s59, s43
s_add_u32 s39, s39, {32*x}
s_sub_u32 s59, 32, s59
s_cmp_lt_u32 s43, s59
s_cbranch_scc1 L_surp_ok
s_sub_u32 s43, s43, s59""")
    a(f"""
s_mov_b32 s39, 0x1000
L_surp_ok:
s_mov_b64 exec, 1
s_cmp_ge_u32 s39, 32
s_cbranch_scc1 L_role_ok
v_mov_b32 v2, {D_MIX}
global_atomic_add v2, v3, {DBG} sc1
s_waitcnt vmcnt(0)
""")

def prologue():
    EP = OPT.get('ep', 0)
    def early():
        t = ""
        for j in range(EP):
            g = j // 4
            t += f"s_mov_b32 s56, 0x{(64*(j%4) + 256*(g%2) + 32*((g//2)%2) + 4*(g//4))*8192:x}\nbuffer_load_dwordx4 v[72:75], v6, s[16:19], s56 offen\n"
        return t
    EARLY1, EARLY0 = "", "s_waitcnt vmcnt(0)"
    if EP:
        EARLY1 = f"""s_mov_b32 s16, s44
s_mov_b32 s17, s45
s_mov_b32 s18, 0x400000
s_mov_b32 s19, 0x20000
s_bfe_u32 s56, s2, 0x50003
s_lshl_b32 s56, s56, 2
s_add_u32 s56, s56, s38
s_and_b32 s58, s56, 7
s_lshl_b32 s58, s58, 10
s_bfe_u32 s59, s56, 0x20003
s_lshl_b32 s59, s59, 13
s_add_u32 s58, s58, s59
s_bfe_u32 s59, s56, 0x20005
s_lshl_b32 s59, s59, 16
s_add_u32 s58, s58, s59
v_lshlrev_b32 v6, 4, v0
v_add_u32 v6, s58, v6
s_cmp_eq_u32 s38, 0
s_cbranch_scc1 L_early1
s_cmp_lg_u32 s40, 0
s_cbranch_scc1 L_early1
{early()}
L_early1:"""
        if not OPT.get('epw', 0): EARLY0 = f"""s_cmp_lg_u32 s40, 0
s_cbranch_scc1 L_early0
s_mov_b64 exec, -1
{early()}
s_mov_b64 exec, 1
s_waitcnt vmcnt({EP})
s_branch L_early2
L_early0:
s_waitcnt vmcnt(0)
L_early2:"""
    EQ = OPT.get('eq', 0)
    if EQ:
        t = ""
        for j in range(3 * EQ):
            t += f"""v_add_u32 v7, 0x{(j%3)*768*1024:x}, v6
v_and_b32 v8, 0x7fff, v7
v_lshrrev_b32 v7, 15, v7
v_lshl_add_u32 v7, v7, 16, v8
buffer_load_dwordx4 v[72:75], v7, s[16:19], {"s56" if j >= 3 else "0"} offen
"""
        EARLY1 = (EARLY1.replace("L_early1", "L_early3") + "\ns_cmp_eq_u32 s40, 0\ns_cbranch_scc1 L_early1\n" if EP else "s_cmp_eq_u32 s40, 0\ns_cbranch_scc1 L_early1\n" if OPT.get('eqr', 0) else "") + f"""s_cmp_eq_u32 s38, 0
s_cbranch_scc1 L_early1
s_mov_b32 s16, s44
s_mov_b32 s17, s45
s_mov_b32 s18, 0x400000
s_mov_b32 s19, 0x20000
s_mul_i32 s56, s2, 3
s_add_u32 s56, s56, s38
s_sub_u32 s56, s56, 1
s_lshl_b32 s56, s56, 10
v_lshlrev_b32 v6, 4, v0
v_add_u32 v6, s56, v6
s_mov_b32 s56, 0x8000
{t}
L_early1:"""
    TT_ = OPT.get('tt', 0)
    if TT_:
        assert not EP and not EQ
        t = ""
        for w, ms in ((1, (44, 46)), (2, (48, 50)), (3, (8, 52))):
            t += f"s_cmp_lg_u32 s38, {w}\ns_cbranch_scc1 L_tt{w}\n"
            for lo in ms:
                t += f"s_mov_b32 s16, s{lo}\ns_mov_b32 s17, s{lo+1}\ns_mov_b32 s18, {0x400000 if 44 <= lo <= 50 else 0x200000 if lo == 8 else 0x1c0000}\ns_mov_b32 s19, 0x20000\nbuffer_load_dword v193, v6, s[16:19], 0 offen\n"
            t += f"L_tt{w}:\n"
        EARLY1 = f"""{"s_getreg_b32 s61, hwreg(HW_REG_HW_ID, 8, 8)" + chr(10) + "s_and_b32 s59, s61, %d" % (0xce if TT_ == 1 else 0x0e) + chr(10) + "s_cmp_lg_u32 s59, 4" + chr(10) + "s_cbranch_scc1 L_early1" if TT_ < 3 else ""}
{"s_cmp_lg_u32 s40, 0" + chr(10) + "s_cbranch_scc1 L_early1" if OPT.get('ttr', 0) else ""}
v_lshlrev_b32 v6, {OPT.get('tts', 16)}, v0
{t}L_early1:"""
    WHO = f"""s_getreg_b32 s40, hwreg(HW_REG_XCC_ID, 0, 4)
v_lshrrev_b32 v1, 6, v0
v_and_b32 v0, 63, v0
{"s_xor_b32 s40, s40, %d" % OPT['rx'] if OPT.get('rx') else ""}
{"s_and_b32 s41, s2, %d%ss_cmp_eq_u32 s41, %d%ss_cselect_b32 s40, 9, s40" % (OPT['fx'], chr(10), OPT['fx'], chr(10)) if OPT.get('fx') else ""}
v_readfirstlane_b32 s38, v1"""
    V0 = ""
    if IC & 24:
        V0 = WHO + "\ns_cmp_eq_u32 s38, 0\ns_cbranch_scc1 L_v0\ns_cmp_lg_u32 s40, 0\ns_cbranch_scc1 L_v0w\n"
        pick = lambda n, c: f"s_cmp_lg_u32 s56, {n}\ns_cbranch_scc1 L_v0{c}\n{visit(c)}\ns_branch L_v0\nL_v0{c}:\n"
        if IC & 8:
            V0 += "s_bfe_u32 s56, s2, 0x10003\ns_mul_i32 s56, s56, 3\ns_add_u32 s56, s56, s38\n"
            for n in range(1, 7): V0 += pick(n, "r%d" % n)
            V0 += ".;chain r1 a0 l0\n.;chain r2 a1 l1\n.;chain r3 a2 l2\n.;chain r4 a3 l3\n.;chain r5 f\n.;chain r6 a4\n"
        V0 += "s_branch L_v0\nL_v0w:\n"
        if IC & 16:
            V0 += "s_mov_b32 s56, s38\n"
            for n in range(1, 4): V0 += pick(n, "w%d" % n)
            V0 += ".;chain w1 wk\n.;chain w2 c0\n.;chain w3 ln\n"
        V0 += "L_v0:"; WHO = ""
    if CP & 1:
        assert not IC & 24
        K = OPT.get('cpk', 1); NL = {1: 2, 2: 1}[K]
        def lo(pc):
            t = f"s_sub_u32 s58, s38, 1\n"
            if K == 2 and OPT.get('cph'): t += "s_and_b32 s59, s61, 1\ns_mul_i32 s59, s59, 3\ns_add_u32 s58, s58, s59\n"
            elif K == 2: t += "s_bfe_u32 s59, s2, 0x10003\ns_mul_i32 s59, s59, 3\ns_add_u32 s58, s58, s59\n"
            t += f"""s_lshl_b32 s58, s58, {13 if K == 2 else 14}
s_mov_b32 s60, L_worker-{pc}
s_cmp_eq_u32 s40, 0
s_cselect_b32 s59, 64, s60
s_cselect_b32 s60, s60, L_end-{pc}
s_add_u32 s58, s58, s59"""
            return t
        WHICH = f"s_cmp_ge_u32 s2, {OPT['cpn']}\ns_cbranch_scc1 L_v0\n" if OPT.get('cpn') else ""
        if OPT.get('cph'):
            WHICH = f"s_getreg_b32 s61, hwreg(HW_REG_HW_ID, 8, 8)\ns_and_b32 s59, s61, {0xce if OPT['cph'] == 2 else 0x0e if OPT['cph'] == 4 else 0xee}\ns_cmp_lg_u32 s59, 2\ns_cbranch_scc1 L_v0\n"
        V0 = WHO + "\ns_cmp_eq_u32 s38, 0\ns_cbranch_scc1 L_v0\n" + WHICH + code_fetch(lo, "s60", None, 2, 192, n=NL) + "L_v0:"; WHO = ""
    a(f"""
s_cmp_ge_u32 s2, 256
s_cbranch_scc1 L_end
{"s_memrealtime s[100:101]" if OPT['stamps'] == 2 else ""}
{V0}
s_load_dwordx2 s[8:9], s[0:1], 0
s_load_dwordx2 s[32:33], s[0:1], 8
s_load_dwordx8 s[44:51], s[0:1], 16
s_load_dwordx4 s[52:55], s[0:1], 64
s_load_dwordx2 s[12:13], s[0:1], 80
s_load_dwordx2 s[36:37], s[0:1], 88
s_load_dwordx2 s[4:5], s[0:1], 96
{WHO}
s_mov_b32 s6, 0x10000000
s_mov_b32 s7, 0x20000
s_mov_b32 s10, 0x200000
s_mov_b32 s11, 0x20000
s_mov_b32 s14, 0x200000
s_mov_b32 s15, 0x20000
s_mov_b32 s34, 0x2000
s_mov_b32 s35, 0x20000
s_waitcnt lgkmcnt(0)
{EARLY1}
s_cmp_lg_u32 s38, 0
s_cbranch_scc1 L_elected
s_min_u32 s41, s40, 8
s_lshl_b32 s42, s41, 2
s_cmp_eq_u32 s41, 0
s_cselect_b32 s42, {D_TICK0}, s42
v_mov_b32 v2, s42
v_mov_b32 v3, 1
s_mov_b64 exec, 1
global_atomic_add v4, v2, v3, {DBG} sc0 sc1
{EARLY0}
v_readfirstlane_b32 s43, v4
s_lshl_b32 s39, s41, 5
s_add_u32 s39, s39, s43
s_cmp_lt_u32 s43, 32
s_cselect_b32 s56, s41, 8
s_cmp_lt_u32 s56, 8
{"s_cbranch_scc0 L_surplus" if OPT.get('so', 0) else "s_cbranch_scc1 L_role_ok"}
""")
    if not OPT.get('so', 0): surplus()
    a(f"""
L_role_ok:
v_mov_b32 v4, s39
v_mov_b32 v2, 0
ds_write_b32 v2, v4
s_waitcnt lgkmcnt(0)
s_mov_b64 exec, -1
L_elected:
{"s_waitcnt vmcnt(0)" if CP & 1 and OPT.get('cpw', 0) else ""}
s_barrier
v_mov_b32 v2, 0
ds_read_b32 v4, v2
s_waitcnt lgkmcnt(0)
v_readfirstlane_b32 s39, v4
s_barrier
s_cmp_ge_u32 s39, 256
s_cbranch_scc1 L_end
s_cmp_ge_u32 s39, 32
s_cbranch_scc1 L_worker
""")

exec(open(__file__.replace('gen.py', 'gen_rec.py')).read())
exec(open(__file__.replace('gen.py', 'gen_worker.py')).read())

def main():
    prologue()
    recurrence()
    worker()
    if OPT.get('so', 0): a("s_endpgm\nL_surplus:"); surplus(); a("s_branch L_role_ok")
    a("L_end:")
    body = a.finalize(pipe=bool(OPT.get('pipe', 1)))
    ref = open('cdna_kernels/%s.s.ref' % NAME).read()
    head = ref[:ref.index('; @launch')]
    txt = head + "; @launch grid=(256,1,1) block=(256,1,1) lds=163840\n"
    txt += f""".amdgcn_target "amdgcn-amd-amdhsa--gfx950"
.text
{".p2alignl 12, 0xbf810000" + chr(10) + ".fill 832, 4, 0xbf810000" + chr(10) if IC else ""}.globl {NAME}_kernel
.p2align 8
.type {NAME}_kernel,@function
{NAME}_kernel:
{body}
s_endpgm
.section .rodata,"a"
.p2align 6
.amdhsa_kernel {NAME}_kernel
  .amdhsa_next_free_vgpr 512
  .amdhsa_next_free_sgpr 102
  .amdhsa_accum_offset 256
  .amdhsa_group_segment_fixed_size 0
  .amdhsa_kernarg_size 104
  .amdhsa_user_sgpr_count 2
  .amdhsa_user_sgpr_kernarg_segment_ptr 1
  .amdhsa_system_sgpr_workgroup_id_x 1
.end_amdhsa_kernel
"""
    open(sys.argv[1], 'w').write(txt)
    print("wrote", sys.argv[1], len(txt), "bytes")

main()
```
